```python
import torch

def _softmax(x, axis=-1):
    return torch.softmax(x, dim=axis)
def _gelu(x):
    return torch.nn.functional.gelu(x, approximate="tanh")
def _silu(x):
    return torch.nn.functional.silu(x)
def _sigmoid(x):
    return torch.sigmoid(x)
def _layernorm(x, axis=-1, eps=1e-5):
    m = x.mean(dim=axis, keepdim=True)
    v = x.var(dim=axis, keepdim=True, unbiased=False)
    return (x - m) / torch.sqrt(v + eps)
def _scatter_add(tgt, idx, src, axis=0):
    return tgt.clone().index_add_(axis, idx, src)
def _segment_sum(src, seg, n):
    out = torch.zeros((n,) + src.shape[1:], dtype=src.dtype)
    return out.index_add_(0, seg, src)
def _pad(x, pw):
    flat = tuple(v for pair in reversed(pw) for v in pair)
    return torch.nn.functional.pad(x, flat)

kernel_name = 'interleave_layers__sliding_block__mixer_channel_mlp__prompt'

def setup_inputs():

    _w = (lambda a: (lambda t: t.to(torch.bfloat16) if t.is_floating_point() else t)(torch.as_tensor(a)))
    def _A_setup():
        B, S, D = 1, 2048, 576
        return {
            "x": _w((lambda *s: torch.randn(*s, dtype=torch.bfloat16) * 0.05)(B, S, D)),
            "wqkv": _w((lambda *s: torch.randn(*s, dtype=torch.bfloat16) * 0.05)(D, 3 * D)),
            "wo": _w((lambda *s: torch.randn(*s, dtype=torch.bfloat16) * 0.05)(D, D)),
        }
    _A_in = _A_setup()

    def _B_setup():
        B, S, D, F = 1, 2048, 576, 4608
        return {
            "x": _w((lambda *s: torch.randn(*s, dtype=torch.bfloat16) * 0.05)(B, S, D)),
            "w1": _w((lambda *s: torch.randn(*s, dtype=torch.bfloat16) * 3.2)(D, F) * (D ** -0.5)),
            "b1": _w((lambda *s: torch.randn(*s, dtype=torch.bfloat16) * 3.2)(F)),
            "w2": _w((lambda *s: torch.randn(*s, dtype=torch.bfloat16) * 0.4)(F, D) * (F ** -0.5)),
            "b2": _w((lambda *s: torch.randn(*s, dtype=torch.bfloat16) * 0.4)(D)),
        }
    _B_in = _B_setup()

    return {
        "A_x": _A_in["x"],
        "A_wqkv": _A_in["wqkv"],
        "A_wo": _A_in["wo"],
        "B_x": _B_in["x"],
        "B_w1": _B_in["w1"],
        "B_b1": _B_in["b1"],
        "B_w2": _B_in["w2"],
        "B_b2": _B_in["b2"],
    }

def reference(A_x, A_wqkv, A_wo, B_x, B_w1, B_b1, B_w2, B_b2):
    def _A_ref(x, wqkv, wo):
        B, S, D = x.shape
        H = 32; Dh = D // H; W = 256
        qkv = (lambda x, *d: x.permute(*d))((x @ wqkv).reshape(B, S, 3, H, Dh), 2, 0, 3, 1, 4)
        q, k, v = qkv[0], qkv[1], qkv[2]
        scores = torch.einsum("bhqd,bhkd->bhqk", q, k) * (Dh ** -0.5)
        idx = torch.arange(S)
        mask = (idx[:, None] - idx[None, :] >= 0) & (idx[:, None] - idx[None, :] < W)
        scores = torch.where(mask[None, None], scores, -1e9)
        p = _softmax(scores, axis=-1)
        o = torch.einsum("bhqk,bhkd->bhqd", p, v)
        return (lambda x, *d: x.permute(*d))(o, 0, 2, 1, 3).reshape(B, S, D) @ wo

    def _B_ref(x, w1, b1, w2, b2):
        y = _layernorm(x, axis=-1)
        h = _gelu(torch.einsum("bsd,df->bsf", y, w1) + b1)
        return torch.einsum("bsf,fd->bsd", h, w2) + b2

    x = A_x
    x = x + _A_ref(_layernorm(x, axis=-1), A_wqkv, A_wo)
    x = x + _B_ref(_layernorm(x, axis=-1), B_w1, B_b1, B_w2, B_b2)
    x = x + _A_ref(_layernorm(x, axis=-1), A_wqkv, A_wo)
    x = x + _B_ref(_layernorm(x, axis=-1), B_w1, B_b1, B_w2, B_b2)
    return x
```

```python
import re
class Asm:
    def __init__(s): s.l=[]
    def __call__(s, x):
        for ln in x.split("\n"):
            ln=ln.strip()
            if ln: s.l.append(ln)
    def label(s,n): s.l.append(n+":")
def vr(a,n=1): return f"v{a}" if n==1 else f"v[{a}:{a+n-1}]"
def sr(a,n=1): return f"s{a}" if n==1 else f"s[{a}:{a+n-1}]"
_REG=re.compile(r"^-?(?:abs\()?([vs])(?:(\d+)|\[(\d+):(\d+)\])\)?$")
def regs(op):
    op=op.strip()
    if op=="vcc": return {("s",106),("s",107)}
    if op in("exec",): return {("s",126),("s",127)}
    m=_REG.match(op)
    if not m: return set()
    k=m.group(1)
    if m.group(2) is not None: return {(k,int(m.group(2)))}
    return {(k,i) for i in range(int(m.group(3)),int(m.group(4))+1)}
TRANS=("v_exp_f32","v_log_f32","v_rcp_f32","v_rsq_f32","v_sqrt_f32")
def parse(ln):
    ln=ln.split(";")[0].strip()
    p=ln.split(None,1); mn=p[0]; ops=[o.strip() for o in p[1].split(",")] if len(p)>1 else []
    if ops: ops[-1]=ops[-1].split()[0] if ops[-1] else ops[-1]
    d=dict(mn=mn,w=set(),r=set(),kind="other",states=1)
    R=lambda i: regs(ops[i]) if i<len(ops) else set()
    if mn=="s_nop": d["states"]=int(ops[0])+1; d["kind"]="nop"
    elif mn.startswith("v_mfma"):
        d["kind"]="mfma"; d["w"]=R(0); d["a"]=R(1)|R(2); d["c"]=R(3); d["r"]=d["a"]|d["c"]; d["passes"]=8 if "32x32" in mn else 4
    elif mn.startswith("v_permlane"):
        d["kind"]="valu"; d["perm"]=True; d["w"]=R(0)|R(1); d["r"]=R(0)|R(1)
    elif mn.startswith("v_cmp"):
        d["kind"]="valu"; d["w"]=R(0); d["r"]=R(1)|R(2)
    elif mn.startswith("v_readfirstlane") or mn.startswith("v_readlane"):
        d["kind"]="valu"; d["rfl"]=True; d["w"]=R(0); d["r"]=R(1)
    elif mn.startswith("v_"):
        d["kind"]="valu"; d["w"]=R(0); d["r"]=set().union(*[R(i) for i in range(1,len(ops))]) if len(ops)>1 else set()
        if mn.startswith("v_fmac") or mn.startswith("v_dot2c"): d["r"]|=R(0)
        if mn.startswith(TRANS): d["trans"]=True
        if mn.startswith("v_dot"): d["dot"]=True
    elif mn.startswith("buffer_load"):
        d["kind"]="vmem"; d["w"]=R(0); d["r"]=R(1)|R(2)|R(3)
    elif mn.startswith("buffer_store"):
        d["kind"]="vmem"; d["r"]=R(0)|R(1)|R(2)|R(3); d["sd"]=R(0) if ("x4" in mn or "x3" in mn) else set()
    elif mn.startswith("ds_read"):
        d["kind"]="ds"; d["w"]=R(0); d["r"]=R(1)
    elif mn.startswith("ds_"):
        d["kind"]="ds"; d["r"]=set().union(*[R(i) for i in range(len(ops))])
    elif mn.startswith("s_"):
        d["kind"]="salu"
    return d
def need(p,c):
    n=0
    V=lambda x:{r for r in x if r[0]=="v"}
    S=lambda x:{r for r in x if r[0]=="s"}
    if p["kind"]=="valu":
        pv=V(p["w"]); ps=S(p["w"])
        if c["kind"]=="mfma" and pv&c["r"]: n=max(n,2)
        if c.get("perm") and pv&c["r"]: n=max(n,2)
        if c.get("rfl") and pv&c["r"]: n=max(n,1)
        if p.get("trans") and c["kind"] in("valu","mfma") and not c.get("trans") and pv&c["r"]: n=max(n,1)
        if p.get("dot") and c["kind"]!="other" and pv&(c["r"]|c["w"]) and not(c.get("dot") and c["mn"]==p["mn"]): n=max(n,3)
        if ps:
            if c["kind"]=="valu" and ps&c["r"]: n=max(n,2)
            if c["kind"]=="vmem" and ps&c["r"]: n=max(n,5)
    if p["kind"]=="mfma":
        big=12 if p["passes"]==8 else 8
        if c["kind"]=="mfma":
            if p["w"]&c["a"]: n=max(n,big)
            if p["w"]&c["c"] and not(p["w"]==c["c"] and p["passes"]==c["passes"]): n=max(n,big-2)
            if p["w"]&c["w"] and not(p["w"]==c["w"] and p["passes"]==c["passes"]): n=max(n,big)
        elif c["kind"] in("valu","vmem","ds"):
            if p["w"]&(c["r"]|c["w"]): n=max(n,big)
            if c["kind"]=="valu" and p["c"]&c["w"]: n=max(n,7 if p["passes"]==8 else 3)
    if p.get("sd") and c["kind"] in("valu","mfma","ds","vmem") and p["sd"]&c["w"]: n=max(n,2)
    return n
def fix_hazards(lines):
    out=[]; hist=[]
    for ln in lines:
        if ln.endswith(":") or ln.startswith(".") or ln.startswith(";"):
            out.append(ln); continue
        c=parse(ln)
        dist=0; req=0
        for p in reversed(hist):
            if dist>=12: break
            req=max(req,need(p,c)-dist)
            dist+=p["states"]
        if req>0:
            out.append(f"s_nop {req-1}"); hist.append(dict(mn="s_nop",w=set(),r=set(),kind="nop",states=req))
        out.append(ln); hist.append(c)
        if len(hist)>40: hist=hist[-20:]
    return out
```

```python
K=1024
FLAGS=0
TSB=64*K
WA=1024*K
WO=WA+8*252*K
W12=WO+8*90*K
KV=W12+8*1296*K
KVL=8*64*9216
OX=KV+2*KVL; XT=73728; XL=32*XT
X1=OX+2*XL
X2=X1+2*XL
PP=X2+XL; PL=32*64*9216
WS_SIZE=PP+2*PL
XB=0; HB=73728; RES=147456; STAT=156672; LDS_SIZE=158720
QB=HB; QX=HB+8192; OB=HB+16384
if __name__=="__main__":
    for n,d,mul,sh in((2304,72,911,16),(1024,27,2428,16),(27,9,57,9),(512,9,7282,16),(72,9,57,9),(80,18,57,10)):
        print(all((i*mul)>>sh==i//d for i in range(n)))
    print(WS_SIZE)
```

```python
from asmlib import *
from layout import *
import struct, math
def f2u(x): return struct.unpack("<I",struct.pack("<f",x))[0]
WSR="s[4:7]";
sTAU,sM,sW,sL,sE,sFAIL,sSTR=20,21,22,23,24,25,26
sWA,sWO,sW12=40,41,42
RING=8; ACC=80; BB=128
class G:
    def __init__(g,opt):
        g.a=Asm(); g.o=opt; g.q=[]; g.cnt=0; g.nl=0; g.nstamp=0; g.names=[]
    def lab(g,p): g.nl+=1; return f"L{p}{g.nl}"
    def stamp(g,name):
        if not g.o.get("ts"): return
        g.names.append(name)
        g.a(f"""{"s_memtime" if g.o["ts"]==2 else "s_memrealtime"} s[98:99]
        s_mul_i32 s97, s{sL}, 24
        s_add_u32 s97, s97, {g.nstamp}
        s_mov_b32 m0, s97
        s_waitcnt lgkmcnt(0)
        v_writelane_b32 v167, s98, m0""")
        g.nstamp+=1
    def vm(g,ins,tag=None): g.a(ins); g.q.append(tag)
    def vwait(g,tag,lg=None):
        n=None
        if tag in g.q:
            i=len(g.q)-1-g.q[::-1].index(tag); n=len(g.q)-1-i; g.q=g.q[i+1:]
        s=(f"vmcnt({n}) " if n is not None else "")+(f"lgkmcnt({lg})" if lg is not None else "")
        if s: g.a("s_waitcnt "+s)
    def drain(g): g.a("s_waitcnt vmcnt(0) lgkmcnt(0)"); g.q=[]
    def stream(g,s): g.a(f"s_mov_b32 s{sSTR}, s{s}"); g.cnt=0
    def ld(g,slot,tag):
        off=(g.cnt%4)*1024
        g.vm(f"buffer_load_dwordx4 {vr(RING+4*slot,4)}, v1, {WSR}, s{sSTR} offen"+(f" offset:{off}" if off else ""),tag)
        g.cnt+=1
        if g.cnt%4==0: g.a(f"s_add_u32 s{sSTR}, s{sSTR}, 4096")
    def prefetch(g,s,n=18):
        g.stream(s)
        for i in range(n): g.ld(i,("w",i))
    def flag(g,k):
        a=g.a; L=g.lab("f")
        g.drain()
        a(f"""s_barrier
        s_cmp_lg_u32 s{sW}, 0
        s_cbranch_scc1 {L}
        s_add_u32 s27, s{sE}, {k}
        s_lshl_b32 s28, s{sTAU}, 8
        s_lshl_b32 s29, s{sM}, 2
        s_add_u32 s28, s28, s29
        v_mov_b32 v2, s27
        v_mov_b32 v3, 0
        s_mov_b64 exec, 1
        buffer_store_dword v2, v3, {WSR}, s28 offen sc1
        s_mov_b64 exec, -1""")
        a.label(L)
    def poll(g,k,kv=False):
        a=g.a; L=g.lab("p"); Lp=g.lab("pl"); Ld=g.lab("pd")
        a(f"""s_cmp_lg_u32 s{sW}, {g.o.get('pollw',0)}
        s_cbranch_scc1 {L}
        s_cmp_lg_u32 s{sFAIL}, 0
        s_cbranch_scc1 {L}""")
        if kv:
            a(f"""s_cmp_eq_u32 s{sTAU}, 0
            s_cbranch_scc1 {L}
            s_min_u32 s29, s{sTAU}, 4
            s_lshl_b32 s29, 1, s29
            s_sub_u32 s30, s29, 1
            s_mov_b32 s31, 0
            s_sub_u32 s28, s{sTAU}, 1
            v_sub_u32 v2, s28, v0
            v_lshlrev_b32 v2, 8, v2
            s_lshl_b32 s28, s{sM}, 2""")
        else:
            a(f"""s_mov_b32 s30, 0xff
            s_mov_b32 s31, 0
            v_lshlrev_b32 v2, 2, v0
            s_lshl_b32 s28, s{sTAU}, 8""")
        a(f"""s_add_u32 s27, s{sE}, {k}
        s_mov_b32 s29, 400000
        s_mov_b64 exec, s[30:31]""")
        a.label(Lp)
        a(f"""buffer_load_dword v3, v2, {WSR}, s28 offen sc1
        s_waitcnt vmcnt(0)
        v_cmp_gt_u32 vcc, s27, v3
        s_nop 1
        s_cbranch_vccz {Ld}
        s_sub_u32 s29, s29, 1
        s_cbranch_scc0 {Lp}
        s_mov_b32 s{sFAIL}, 1""")
        a.label(Ld)
        a("s_mov_b64 exec, -1")
        a.label(L)
        a("s_barrier")
    def gather_ld(g,base_s):
        a=g.a
        a(f"""s_lshr_b32 s27, s{sW}, 2
        s_mul_i32 s27, s27, 24576
        s_and_b32 s28, s{sW}, 3
        s_lshl_b32 s28, s28, 10
        s_add_u32 s27, s27, s28
        s_add_u32 s28, s27, s{base_s}""")
        for i in range(6):
            g.vm(f"buffer_load_dwordx4 {vr(BB+4*i,4)}, v1, {WSR}, s28 offen sc1",("g",i))
            if i<5: a("s_add_u32 s28, s28, 4096")
    def xw_addr(g):
        g.a(f"""s_lshr_b32 s27, s{sW}, 2
        s_mul_i32 s27, s27, 24576
        s_and_b32 s28, s{sW}, 3
        s_lshl_b32 s28, s28, 10
        s_add_u32 s27, s27, s28
        v_add_u32 v4, s27, v1""")
    def ln(g,double):
        a=g.a; X=ACC
        a("v_mov_b32 v152, 0\nv_mov_b32 v153, 0\nv_mov_b32 v154, 0\nv_mov_b32 v155, 0\ns_mov_b32 s27, 0xffff0000")
        for i in range(6):
            g.vwait(("g",i))
            for k in range(4):
                r=BB+4*i+k; lo=X+8*i+2*k
                a(f"""v_lshlrev_b32 v{lo}, 16, v{r}
                v_and_b32 v{lo+1}, s27, v{r}
                v_add_f32 v152, v152, v{lo}
                v_fmac_f32 v154, v{lo}, v{lo}
                v_add_f32 v153, v153, v{lo+1}
                v_fmac_f32 v155, v{lo+1}, v{lo+1}""")
        a(f"""v_add_f32 v152, v152, v153
        v_add_f32 v154, v154, v155
        v_and_b32 v2, 15, v0
        s_and_b32 s28, s{sW}, 3
        s_lshl_b32 s28, s28, 9
        s_add_u32 s28, s28, {STAT}
        v_lshl_add_u32 v2, v2, 5, s28
        v_permlane32_swap_b32 v152, v154
        v_add_f32 v152, v152, v154
        v_mov_b32 v153, v152
        v_lshrrev_b32 v3, 5, v0
        s_lshr_b32 s28, s{sW}, 2
        s_lshl_b32 s28, s28, 3
        v_permlane16_swap_b32 v152, v153
        v_add_f32 v152, v152, v153
        v_lshl_add_u32 v3, v3, 2, s28
        v_add_u32 v3, v3, v2
        ds_write_b32 v3, v152
        s_waitcnt lgkmcnt(0)
        s_barrier
        ds_read_b128 v[152:155], v2
        ds_read_b64 v[156:157], v2 offset:16""")
        g.xw_addr()
        a(f"""s_mov_b32 s27, {f2u(1/576):#x}
        s_mov_b32 s28, {f2u(1e-5):#x}
        s_waitcnt lgkmcnt(0)
        v_add_f32 v152, v152, v154
        v_add_f32 v153, v153, v155
        v_add_f32 v152, v152, v156
        v_add_f32 v153, v153, v157
        v_mul_f32 v152, s27, v152
        v_mul_f32 v153, s27, v153
        v_fma_f32 v153, -v152, v152, v153
        v_max_f32 v153, 0, v153
        v_add_f32 v154, s28, v153
        v_rsq_f32 v154, v154""")
        if double:
            a(f"""v_mul_f32 v155, v154, v154
            v_fma_f32 v155, v155, v153, s28
            v_rsq_f32 v155, v155
            v_mul_f32 v154, v154, v155""")
        a("v_mul_f32 v152, v152, v154")
        for i in range(6):
            for k in range(8): a(f"v_fma_f32 v{X+8*i+k}, v{X+8*i+k}, v154, -v152")
            for k in range(4): a(f"v_cvt_pk_bf16_f32 v{BB+4*i+k}, v{X+8*i+2*k}, v{X+8*i+2*k+1}")
            a(f"ds_write_b128 v4, {vr(BB+4*i,4)} offset:{XB+i*4096}")
    def gemm(g,nt,ntt,trans,q0,refill,czero,prio=None):
        a=g.a
        def brd(s):
            for t in range(ntt):
                a(f"ds_read_b128 {vr(BB+16*(s&1)+4*t,4)}, v{6+s//9} offset:{(s%9)*4096+t*1024}")
        brd(0)
        for s in range(18):
            if s<17: brd(s+1)
            for j in range(nt):
                q=q0+s*nt+j
                g.vwait(("w",q),lg=((ntt if s<17 else 0) if j==0 else None))
                w=vr(RING+4*(q%18),4)
                for t in range(ntt):
                    d=vr(ACC+4*(j*ntt+t),4); b=vr(BB+16*(s&1)+4*t,4)
                    c="0" if (czero and s==0) else d
                    a(f"v_mfma_f32_16x16x32_bf16 {d}, {w}, {b}, {c}" if trans else f"v_mfma_f32_16x16x32_bf16 {d}, {b}, {w}, {c}")
                refill(q)
    def baddr(g,base,half=False):
        if half: g.a(f"s_and_b32 s27, s{sW}, 1\ns_lshl_b32 s27, s27, 11\ns_add_u32 s27, s27, {base}\nv_add_u32 v6, s27, v1")
        else: g.a(f"v_add_u32 v6, {base}, v1")
        g.a("v_add_u32 v7, 36864, v6")
    def pack(g,dst,x,y,swap=True):
        a=g.a
        a(f"""v_cvt_pk_bf16_f32 v{dst}, v{x}, v{x+1}
        v_cvt_pk_bf16_f32 v{dst+2}, v{y}, v{y+1}
        v_cvt_pk_bf16_f32 v{dst+1}, v{x+2}, v{x+3}
        v_cvt_pk_bf16_f32 v{dst+3}, v{y+2}, v{y+3}""")
        if swap: a(f"v_permlane16_swap_b32 v{dst}, v{dst+2}\nv_permlane16_swap_b32 v{dst+1}, v{dst+3}")
    def kvbase(g,s):
        g.a(f"""s_lshl_b32 s{s}, s{sM}, 6
        s_lshl_b32 s96, s{sTAU}, 1
        s_add_u32 s{s}, s{s}, s96
        s_mul_i32 s{s}, s{s}, 9216
        s_mul_i32 s96, s{sL}, {KVL}
        s_add_u32 s{s}, s{s}, s96
        s_add_u32 s{s}, s{s}, {KV}""")
    def xbase(g,s,base,lstride):
        g.a(f"""s_mul_i32 s{s}, s{sTAU}, {XT}
        s_add_u32 s{s}, s{s}, {base}""")
        if lstride: g.a(f"s_mul_i32 s96, s{sL}, {lstride}\ns_add_u32 s{s}, s{s}, s96")
    def xstore_addr(g):
        g.a(f"""s_mul_i32 s27, s{sM}, 9
        s_add_u32 s27, s27, s{sW}
        s_lshr_b32 s28, s27, 2
        s_lshl_b32 s28, s28, 12
        s_and_b32 s27, s27, 3
        s_lshl_b32 s27, s27, 8
        s_add_u32 s28, s28, s27
        v_lshrrev_b32 v2, 4, v0
        v_lshlrev_b32 v2, 10, v2
        v_and_b32 v3, 15, v0
        v_lshl_add_u32 v2, v3, 4, v2
        v_add_u32 v2, s28, v2""")
```

```python
from mainK import *
def entry(g):
    a=g.a
    a.label("main_kernel")
    a(f"""s_cmp_ge_u32 s2, 256
    s_cbranch_scc1 M_END
    s_load_dwordx2 s[26:27], s[0:1], 0
    s_load_dwordx2 s[28:29], s[0:1], 40
    s_load_dwordx4 s[32:35], s[0:1], 56
    s_load_dwordx2 s[30:31], s[0:1], 80
    v_lshrrev_b32 v2, 6, v0
    v_and_b32 v0, 63, v0
    v_readfirstlane_b32 s{sW}, v2
    v_lshlrev_b32 v1, 4, v0""")
    mp=g.o.get("map",0)
    if mp==0: a(f"s_and_b32 s{sM}, s2, 7\ns_lshr_b32 s{sTAU}, s2, 3")
    elif mp==1: a(f"""s_and_b32 s36, s2, 3
        s_lshl_b32 s36, s36, 1
        s_bfe_u32 s37, s2, 0x10003
        s_add_u32 s{sM}, s36, s37
        s_bfe_u32 s36, s2, 0x10002
        s_lshl_b32 s36, s36, 4
        s_lshr_b32 s37, s2, 4
        s_add_u32 s{sTAU}, s36, s37""")
    elif mp==2: a(f"""s_and_b32 s36, s2, 7
        s_lshl_b32 s36, s36, 2
        s_bfe_u32 s37, s2, 0x20003
        s_add_u32 s{sTAU}, s36, s37
        s_lshr_b32 s{sM}, s2, 5""")
    elif mp==3: a(f"""s_and_b32 s36, s2, 1
        s_lshl_b32 s36, s36, 2
        s_bfe_u32 s37, s2, 0x20003
        s_add_u32 s{sM}, s36, s37
        s_bfe_u32 s36, s2, 0x20001
        s_lshl_b32 s36, s36, 3
        s_lshr_b32 s37, s2, 5
        s_add_u32 s{sTAU}, s36, s37""")
    a(f"""s_mov_b32 s{sL}, 0
    s_mov_b32 s{sE}, 0
    s_mov_b32 s{sFAIL}, 0
    s_mul_i32 s36, s{sW}, {36*K}
    s_mul_i32 s37, s{sW}, {18*K}
    s_add_u32 s37, s37, {72*K}
    s_cmp_lt_u32 s{sW}, 4
    s_cselect_b32 s36, s36, s37
    s_cmp_ge_u32 s{sW}, 8
    s_cselect_b32 s36, {216*K}, s36
    s_cmp_ge_u32 s{sW}, 10
    s_cselect_b32 s36, {234*K}, s36
    s_mul_i32 s37, s{sM}, {252*K}
    s_add_u32 s36, s36, s37
    s_add_u32 s{sWA}, s36, {WA}
    s_lshr_b32 s36, s{sW}, 1
    s_min_u32 s36, s36, 4
    s_mul_i32 s36, s36, {18*K}
    s_mul_i32 s37, s{sM}, {90*K}
    s_add_u32 s36, s36, s37
    s_add_u32 s{sWO}, s36, {WO}
    s_mul_i32 s36, s{sW}, {108*K}
    s_mul_i32 s37, s{sM}, {1296*K}
    s_add_u32 s36, s36, s37
    s_add_u32 s{sW12}, s36, {W12}
    s_min_u32 s36, s{sW}, 8
    s_lshl_b32 s36, s36, 4
    s_mul_i32 s37, s{sM}, 144
    s_add_u32 s43, s36, s37
    s_waitcnt lgkmcnt(0)
    s_load_dwordx4 s[44:47], s[32:33], s43
    s_mov_b32 s4, s30
    s_mov_b32 s5, s31
    s_mov_b32 s6, {WS_SIZE}
    s_mov_b32 s7, 0x20000
    s_mov_b32 s8, s26
    s_mov_b32 s9, s27
    s_mov_b32 s10, {2048*1152}
    s_mov_b32 s11, 0x20000
    s_mov_b32 s12, s34
    s_mov_b32 s13, s35
    s_mov_b32 s14, {2048*1152}
    s_mov_b32 s15, 0x20000
    s_mov_b32 s16, s28
    s_mov_b32 s17, s29
    s_mov_b32 s18, 9216
    s_mov_b32 s19, 0x20000""")
    if g.o.get("ts"): a("v_mov_b32 v167, 0")
    g.stamp("start")
    a(f"""s_lshl_b32 s36, s{sTAU}, 6
    v_add_u32 v2, s36, v0
    v_mul_u32_u24 v2, 1152, v2
    s_and_b32 s37, s{sW}, 3
    s_lshl_b32 s37, s37, 4
    s_add_u32 s36, s36, s37
    v_and_b32 v3, 15, v0
    v_add_u32 v3, s36, v3
    v_mul_u32_u24 v3, 1152, v3
    v_lshrrev_b32 v4, 4, v0
    v_lshl_add_u32 v3, v4, 4, v3
    s_lshr_b32 s36, s{sW}, 2
    s_mul_i32 s36, s36, 384""")
    for i in range(6): g.vm(f"buffer_load_dwordx4 {vr(BB+4*i,4)}, v3, s[8:11], s36 offen offset:{64*i}",("g",i))
    g.vm(f"buffer_load_dwordx4 v[160:163], v2, s[8:11], s43 offen","res")
    g.prefetch(sWA)
    a(f"""v_and_b32 v2, 31, v0
    v_lshrrev_b32 v3, 5, v0
    v_lshlrev_b32 v3, 2, v3
    v_sub_u32 v2, v2, v3""")
    for r in range(16):
        key=(r&3)+8*(r>>3)+16*((r>>2)&1)
        a(f"v_cmp_le_i32 s[{64+2*r}:{65+2*r}], {key}, v2")
    a(f"s_mov_b32 s60, {f2u(18**-0.5*math.log2(math.e)):#x}\ns_waitcnt lgkmcnt(0)")
    for i in range(4): a(f"s_lshl_b32 s{48+2*i}, s{44+i}, 16\ns_and_b32 s{49+2*i}, s{44+i}, 0xffff0000")
    a(f"s_min_u32 s36, s{sW}, 8\ns_lshl_b32 s36, s36, 10\ns_add_u32 s36, s36, {RES}\nv_add_u32 v2, s36, v1")
    g.vwait("res")
    a("ds_write_b128 v2, v[160:163]\ns_waitcnt vmcnt(0)\ns_branch A_LN")
    g.q=[]
def phaseA(g):
    a=g.a
    a.label("A_TOP")
    g.poll(0)
    g.stamp("A.polled")
    g.xbase(29,X2,0)
    g.gather_ld(29)
    a.label("A_LN")
    g.ln(False)
    a("s_waitcnt lgkmcnt(0)\ns_barrier")
    g.stamp("A.ln")
    g.kvbase(36)
    a(f"""s_cmp_ge_u32 s{sW}, 8
    s_cbranch_scc1 A_HALF
    s_cmp_ge_u32 s{sW}, 4
    s_cbranch_scc1 A_V""")
    g.q=[]; g.cnt=18
    if g.o.get("prioA",1): a("s_setprio 1")
    g.baddr(XB)
    a(f"s_add_u32 s{sSTR}, s{sWA}, {16*K}")
    g.gemm(2,4,True,0,lambda q: g.ld(q,("w",q+18)) if q<18 else None,True)
    a(f"""v_lshrrev_b32 v2, 3, v0
    v_lshrrev_b32 v3, 4, v0
    v_xor_b32 v2, v2, v3
    v_and_b32 v2, 1, v2
    v_mul_u32_u24 v2, 24, v2
    v_xor_b32 v2, v2, v0
    v_lshlrev_b32 v2, 4, v2
    s_mul_i32 s27, s{sW}, 2304
    s_add_u32 s36, s36, s27
    s_add_u32 s37, s36, 9216
    s_lshl_b32 s27, s{sW}, 11
    s_add_u32 s27, s27, {QB}
    v_add_u32 v3, s27, v1""")
    for p in range(2):
        g.pack(BB+4*p,ACC+8*p,ACC+8*p+4)
        a(f"buffer_store_dwordx4 {vr(BB+4*p,4)}, v2, {WSR}, s{36+p} offen sc1")
    for p in range(2):
        g.pack(BB+8+4*p,ACC+16+8*p,ACC+16+8*p+4)
        a(f"ds_write_b128 v3, {vr(BB+8+4*p,4)} offset:{1024*p}")
    a("s_setprio 0\ns_branch A_DONE")
    def vaddr(tv):
        a(f"""v_and_b32 v2, 15, v0
        v_add_u32 v2, {tv}, v2
        v_mul_u32_u24 v3, 57, v2
        v_lshrrev_b32 v3, 10, v3
        v_mul_u32_u24 v4, 18, v3
        v_sub_u32 v2, v2, v4
        v_bfe_u32 v4, v0, 4, 1
        v_mad_u32_u24 v2, v4, 18, v2
        v_lshlrev_b32 v2, 4, v2
        v_mul_u32_u24 v3, 2304, v3
        v_lshrrev_b32 v4, 5, v0
        v_mul_u32_u24 v4, 576, v4
        v_add3_u32 v2, v2, v3, v4""")
    a.label("A_V")
    g.q=[]
    g.baddr(XB)
    g.gemm(1,4,False,0,lambda q:None,True)
    a(f"s_sub_u32 s27, s{sW}, 4\ns_lshl_b32 s27, s27, 4\ns_add_u32 s37, s36, 9216")
    vaddr("s27")
    for p in range(2):
        g.pack(BB+4*p,ACC+8*p,ACC+8*p+4,False)
        a(f"buffer_store_dwordx4 {vr(BB+4*p,4)}, v2, {WSR}, s{36+p} offen offset:1152 sc1")
    a("s_branch A_DONE")
    a.label("A_HALF")
    g.baddr(XB,True)
    a(f"""s_and_b32 s27, s{sW}, 1
    s_mul_i32 s28, s27, 9216
    s_add_u32 s36, s36, s28
    s_cmp_ge_u32 s{sW}, 10
    s_cbranch_scc1 A_EX""")
    g.gemm(1,2,False,0,lambda q:None,True)
    vaddr("64")
    g.pack(BB,ACC,ACC+4,False)
    a(f"""s_mov_b32 exec_lo, 0x00ff00ff
    s_mov_b32 exec_hi, 0x00ff00ff
    buffer_store_dwordx4 {vr(BB,4)}, v2, {WSR}, s36 offen offset:1152 sc1
    s_mov_b64 exec, -1
    s_branch A_DONE""")
    a.label("A_EX")
    g.gemm(1,2,True,0,lambda q:None,True)
    a(f"""v_lshrrev_b32 v4, 4, v0
    v_mul_u32_u24 v2, 2304, v4
    v_bfe_u32 v3, v0, 3, 1
    v_lshl_add_u32 v2, v3, 6, v2
    v_and_b32 v3, 7, v0
    v_lshl_add_u32 v2, v3, 2, v2
    v_and_b32 v3, 15, v0
    v_lshlrev_b32 v3, 2, v3
    v_lshl_add_u32 v3, v4, 8, v3
    s_and_b32 s27, s{sW}, 1
    s_lshl_b32 s27, s27, 7
    s_add_u32 s27, s27, {QX}
    v_add_u32 v3, s27, v3""")
    for t in range(2):
        a(f"""v_cvt_pk_bf16_f32 v{BB+2*t}, v{ACC+4*t}, v{ACC+4*t+1}
        v_cvt_pk_bf16_f32 v{BB+2*t+1}, v{ACC+4*t+2}, v{ACC+4*t+3}
        buffer_store_dword v{BB+2*t}, v2, {WSR}, s36 offen offset:{1024+32*t} sc1
        ds_write_b32 v3, v{BB+2*t+1} offset:{64*t}""")
    a.label("A_DONE")
    g.stamp("A.gemm")
    g.flag(1)
    g.stamp("A.flag")
def phaseB(g):
    a=g.a; tail=Asm()
    Q1,Q2,O,S=8,12,16,32; KS=[80,98]; VS=[116,140]
    a(f"""v_and_b32 v2, 31, v0
    v_lshlrev_b32 v2, 2, v2
    s_mov_b32 vcc_lo, 0x00220000
    s_mov_b32 vcc_hi, 0x00220000
    v_mov_b32 v4, 0x3f803f80
    v_cndmask_b32 v4, 0, v4, vcc""")
    for i in range(48): a(f"v_mov_b32 v{116+i}, v4")
    for i in range(6): a(f"v_mov_b32 v{81+6*i}, 0")
    a(f"""v_mov_b32 v13, 0
    v_mov_b32 v14, 0
    v_mov_b32 v15, 0
    v_mov_b32 v166, {f2u(-1e30):#x}
    v_and_b32 v3, 3, v0
    v_bfe_u32 v4, v0, 3, 2
    v_lshl_add_u32 v3, v4, 2, v3
    v_bfe_u32 v4, v0, 2, 1
    v_mad_u32_u24 v3, v4, 9, v3
    v_lshrrev_b32 v4, 5, v0
    v_mad_u32_u24 v3, v4, 18, v3
    v_lshlrev_b32 v3, 4, v3
    s_and_b32 s37, s{sW}, 3
    s_bfe_u32 s38, s{sW}, 0x10002
    s_lshl_b32 s39, s37, 1
    s_add_u32 s39, s39, s38
    s_lshl_b32 s39, s39, 10
    s_add_u32 s39, s39, {QB}
    v_add_u32 v4, s39, v1
    ds_read_b128 v[8:11], v4
    s_lshl_b32 s39, s37, 8
    s_lshl_b32 s96, s38, 7
    s_add_u32 s39, s39, s96
    s_add_u32 s39, s39, {QX}
    v_add_u32 v4, s39, v2
    ds_read_b32 v12, v4
    v_cmp_gt_u32 vcc, 32, v0
    s_waitcnt lgkmcnt(0)
    v_cndmask_b32 v12, 0, v12, vcc
    v_mov_b32 v6, v2
    v_mov_b32 v7, v3""")
    g.poll(1,kv=True)
    g.stamp("B.polled")
    a(f"""s_cmp_ge_u32 s{sW}, 8
    s_cbranch_scc1 B_DONE
    s_lshl_b32 s36, s{sTAU}, 1
    s_add_u32 s36, s36, s38
    s_sub_u32 s36, s36, 8
    s_mul_i32 s39, s{sM}, {64*9216}
    s_mul_i32 s96, s{sL}, {KVL}
    s_add_u32 s39, s39, s96
    s_mul_i32 s96, s37, 2304
    s_add_u32 s39, s39, s96
    s_add_u32 s39, s39, {KV}""")
    for kb in range(8,-1,-1):
        a(f"""s_add_i32 s96, s36, {kb}
        s_max_i32 s96, s96, 0
        s_mul_i32 s96, s96, 9216
        s_add_u32 s{27+kb}, s39, s96""")
    g.q=[]
    def ldK(gi,st):
        for b in range(3):
            r=KS[st]+6*b; s=27+3*gi+b
            g.vm(f"buffer_load_dwordx4 {vr(r+2,4)}, v1, {WSR}, s{s} offen sc1",None)
            g.vm(f"buffer_load_dword v{r}, v6, {WSR}, s{s} offen offset:1024 sc1",("K",gi))
    def ldV(gi,st):
        a("s_mov_b32 exec_lo, 0x0011ffff\ns_mov_b32 exec_hi, 0x0011ffff")
        for b in range(3):
            r=VS[st]+8*b; s=27+3*gi+b
            g.vm(f"buffer_load_dwordx4 {vr(r,4)}, v7, {WSR}, s{s} offen offset:1152 sc1",None)
            g.vm(f"buffer_load_dwordx4 {vr(r+4,4)}, v7, {WSR}, s{s} offen offset:1728 sc1",("V",gi))
        a("s_mov_b64 exec, -1")
    ldK(2,0); ldV(2,0); ldK(1,1); ldV(1,1)
    def grp(gi,st,first):
        if not first:
            a(f"s_cmp_lt_i32 s36, {-(3*gi+2)}\ns_cbranch_scc1 B_SKIP{gi}")
            tail.label(f"B_SKIP{gi}"); tail(f"s_nop 15\ns_branch B_GE{gi}")
        g.vwait(("K",gi))
        order=[2,1,0] if gi==2 else [0,1,2]
        for b in order:
            kb=3*gi+b; r=KS[st]+6*b; d=vr(S+16*b,16)
            if b<2:
                a(f"s_cmp_lt_i32 s36, {-kb}\ns_cbranch_scc1 B_FILL{kb}")
                tail.label(f"B_FILL{kb}"); tail("s_nop 15")
                for i in range(16): tail(f"v_mov_b32 v{S+16*b+i}, v166")
                tail(f"s_branch B_BK{kb}")
            a(f"v_mfma_f32_32x32x16_bf16 {d}, {vr(r+2,4)}, {vr(Q1,4)}, 0\nv_mfma_f32_32x32x16_bf16 {d}, {vr(r,4)}, {vr(Q2,4)}, {d}")
            if b<2: a.label(f"B_BK{kb}")
        if first: ldK(0,0)
        if gi==2:
            for i in range(16): a(f"v_cndmask_b32 v{S+32+i}, v166, v{S+32+i}, s[{64+2*i}:{65+2*i}]")
        if gi==0:
            for i in range(16): a(f"v_cndmask_b32 v{S+i}, v{S+i}, v166, s[{64+2*i}:{65+2*i}]")
        rr=[S+16*b+i for b in order for i in range(16)]
        a(f"v_max3_f32 v4, v{rr[0]}, v{rr[1]}, v{rr[2]}\nv_max3_f32 v5, v{rr[3]}, v{rr[4]}, v{rr[5]}")
        k=6; c=0
        while k<48:
            a(f"v_max3_f32 v{4+c}, v{4+c}, v{rr[k]}, v{rr[k+1]}"); k+=2; c^=1
        a("v_max_f32 v4, v4, v5\nv_mov_b32 v5, v4\nv_permlane32_swap_b32 v4, v5")
        if first: a("v_max_f32 v164, v4, v5")
        else: a("""v_max3_f32 v4, v4, v5, v164
            v_sub_f32 v5, v164, v4
            v_mul_f32 v5, s60, v5
            v_exp_f32 v5, v5
            v_mov_b32 v164, v4""")
        a("v_mul_f32 v165, s60, v164")
        if not first:
            for i in range(10): a(f"v_mul_f32 v{O+i}, v{O+i}, v5")
        for n,b in enumerate(order):
            x=S+16*b
            for h in range(2):
                for i in range(8): a(f"v_fma_f32 v{x+8*h+i}, v{x+8*h+i}, s60, -v165")
                for i in range(8): a(f"v_exp_f32 v{x+8*h+i}, v{x+8*h+i}")
                for i in range(4): a(f"v_cvt_pk_bf16_f32 v{x+4*h+i}, v{x+8*h+2*i}, v{x+8*h+2*i+1}")
            if n==0: g.vwait(("V",gi))
            r=VS[st]+8*b; o=vr(O,16)
            a(f"v_mfma_f32_32x32x16_bf16 {o}, {vr(r,4)}, {vr(x,4)}, {'0' if first and n==0 else o}\nv_mfma_f32_32x32x16_bf16 {o}, {vr(r+4,4)}, {vr(x+4,4)}, {o}")
        if first: ldV(0,0)
        if not first: a.label(f"B_GE{gi}")
    grp(2,0,True); grp(1,1,False); grp(0,0,False)
    a(f"""v_and_b32 v2, 31, v0
    s_lshl_b32 s39, s38, 5
    v_add_u32 v2, s39, v2
    v_mul_u32_u24 v2, 144, v2
    v_lshrrev_b32 v3, 5, v0
    v_mad_u32_u24 v2, v3, 18, v2
    s_mul_i32 s39, s37, 36
    s_add_u32 s39, s39, {OB}
    v_add_u32 v2, s39, v2
    s_nop 4
    v_rcp_f32 v4, v{O+9}""")
    for i in range(9): a(f"v_mul_f32 v{O+i}, v{O+i}, v4")
    for i in range(5): a(f"v_cvt_pk_bf16_f32 v{S+i}, v{O+2*i}, v{O+min(2*i+1,8)}")
    for i in range(9): a(f"ds_write_b16{'_d16_hi' if i&1 else ''} v2, v{S+i//2} offset:{2*i}")
    a.label("B_DONE")
    g.stamp("B.attn")
    a(f"s_waitcnt lgkmcnt(0)\ns_barrier\ns_cmp_ge_u32 s{sW}, 9\ns_cbranch_scc1 B_ST")
    a(f"""v_mul_u32_u24 v4, 144, v0
    s_lshl_b32 s27, s{sW}, 4
    s_add_u32 s27, s27, {OB}
    v_add_u32 v4, s27, v4
    ds_read_b128 v[8:11], v4""")
    g.xstore_addr(); g.xbase(29,OX,XL)
    a(f"s_waitcnt lgkmcnt(0)\nbuffer_store_dwordx4 v[8:11], v2, {WSR}, s29 offen sc1")
    a.label("B_ST")
    g.flag(2)
    g.stamp("B.flag")
    return tail
```

```python
from mainK import *
def phaseB2(g):
    a=g.a
    g.q=[]
    g.prefetch(sWO)
    g.poll(2)
    g.stamp("B2.polled")
    g.xbase(29,OX,XL); g.gather_ld(29); g.xw_addr()
    for i in range(6):
        g.vwait(("g",i)); a(f"ds_write_b128 v4, {vr(BB+4*i,4)} offset:{XB+i*4096}")
    g.baddr(XB,True)
    a(f"s_waitcnt lgkmcnt(0)\ns_barrier")
    g.stamp("B2.gath")
    a(f"s_cmp_ge_u32 s{sW}, 10\ns_cbranch_scc1 B2_DONE")
    g.gemm(1,2,True,0,lambda q:None,True)
    a(f"""s_lshr_b32 s27, s{sW}, 1
    s_and_b32 s28, s{sW}, 1
    s_lshl_b32 s30, s27, 11
    s_lshl_b32 s31, s28, 9
    s_add_u32 s30, s30, s31
    s_add_u32 s30, s30, {RES}
    v_lshrrev_b32 v3, 5, v0
    v_and_b32 v2, 31, v0
    v_lshlrev_b32 v2, 4, v2
    v_lshl_add_u32 v2, v3, 10, v2
    v_add_u32 v5, s30, v2
    s_cmp_eq_u32 s27, 4
    s_cselect_b32 exec_hi, 0, -1
    ds_read_b128 {vr(BB,4)}, v5
    s_mov_b32 exec_hi, -1
    s_mul_i32 s30, s{sM}, 9
    s_lshl_b32 s31, s27, 1
    s_add_u32 s30, s30, s31
    v_add_u32 v3, s30, v3
    v_lshrrev_b32 v2, 2, v3
    v_lshlrev_b32 v2, 12, v2
    v_and_b32 v3, 3, v3
    v_lshl_add_u32 v2, v3, 8, v2
    v_bfe_u32 v3, v0, 4, 1
    v_lshl_add_u32 v2, v3, 10, v2
    v_and_b32 v3, 15, v0
    v_lshl_add_u32 v2, v3, 4, v2
    s_lshl_b32 s28, s28, 11""")
    g.xbase(29,X1,XL)
    a("s_add_u32 s29, s29, s28\ns_mov_b32 s30, 0xffff0000")
    for r in range(4): a(f"v_permlane16_swap_b32 v{ACC+r}, v{ACC+4+r}")
    a("s_waitcnt lgkmcnt(0)")
    for k in range(4):
        a(f"""v_lshlrev_b32 v{BB+4}, 16, v{BB+k}
        v_and_b32 v{BB+5}, s30, v{BB+k}
        v_add_f32 v{ACC+2*k}, v{ACC+2*k}, v{BB+4}
        v_add_f32 v{ACC+2*k+1}, v{ACC+2*k+1}, v{BB+5}
        v_cvt_pk_bf16_f32 v{BB+8+k}, v{ACC+2*k}, v{ACC+2*k+1}""")
    a(f"""s_cmp_eq_u32 s27, 4
    s_cselect_b32 exec_hi, 0, -1
    buffer_store_dwordx4 {vr(BB+8,4)}, v2, {WSR}, s29 offen sc1
    ds_write_b128 v5, {vr(BB+8,4)}
    s_mov_b32 exec_hi, -1""")
    a.label("B2_DONE")
    g.stamp("B2.gemm")
    g.flag(3)
    g.stamp("B2.flag")
def phaseC(g):
    a=g.a
    g.q=[]
    a(f"""s_mul_i32 s27, s{sM}, 1152
    s_mul_i32 s28, s{sW}, 96
    s_add_u32 s27, s27, s28
    v_lshrrev_b32 v2, 4, v0
    v_lshlrev_b32 v2, 3, v2""")
    for j in range(3): g.vm(f"buffer_load_dwordx2 {vr(160+2*j,2)}, v2, s[16:19], s27 offen offset:{32*j}")
    g.prefetch(sW12)
    g.poll(3)
    g.stamp("C.polled")
    g.xbase(29,X1,XL); g.gather_ld(29)
    g.ln(True)
    a("s_mov_b32 s27, 0xffff0000")
    for j in range(3):
        for k in range(2):
            a(f"v_lshlrev_b32 v{ACC+16*j+2*k}, 16, v{160+2*j+k}\nv_and_b32 v{ACC+16*j+2*k+1}, s27, v{160+2*j+k}")
        for t in range(1,4):
            for r in range(4): a(f"v_mov_b32 v{ACC+16*j+4*t+r}, v{ACC+16*j+r}")
    g.baddr(XB)
    a("s_waitcnt lgkmcnt(0)\ns_barrier")
    g.stamp("C.ln")
    pr=g.o.get("prioC",1)
    def setp(hi):
        if not pr: return
        L=g.lab("sp")
        a(f"s_cmp_lt_u32 s{sW}, 8\ns_cbranch_scc0 {L}\ns_setprio 1\ns_cmp_lt_u32 s{sW}, 4\ns_cbranch_scc0 {L}\ns_setprio 2"); a.label(L)
    setp(1)
    g.gemm(3,4,True,0,lambda q:g.ld(q%18,("w",q+18)),False)
    g.stamp("C.g1")
    c2=-2*math.sqrt(2/math.pi)*math.log2(math.e); c1=c2*0.044715
    a(f"""s_mov_b32 s61, {f2u(c1):#x}
    v_mov_b32 v160, {f2u(c2):#x}
    v_bfe_u32 v3, v0, 4, 1
    v_lshlrev_b32 v2, 10, v3
    v_lshrrev_b32 v3, 5, v0
    v_lshl_add_u32 v2, v3, 8, v2
    v_and_b32 v3, 15, v0
    v_lshl_add_u32 v2, v3, 4, v2""")
    for j in range(3):
        a(f"""s_mul_i32 s27, s{sW}, 3
        s_add_u32 s27, s27, {j}
        s_lshr_b32 s28, s27, 1
        s_lshl_b32 s28, s28, 12
        s_and_b32 s27, s27, 1
        s_lshl_b32 s27, s27, 9
        s_add_u32 s27, s27, s28
        s_add_u32 s27, s27, {HB}
        v_add_u32 v{3+j}, s27, v2""")
    T=BB
    for j in range(3):
        for p in range(2):
            x=ACC+16*j+8*p
            for i in range(8): a(f"v_mul_f32 v{T+i}, v{x+i}, v{x+i}")
            for i in range(8): a(f"v_fma_f32 v{T+i}, v{T+i}, s61, v160")
            for i in range(8): a(f"v_mul_f32 v{T+i}, v{T+i}, v{x+i}")
            for i in range(8): a(f"v_exp_f32 v{T+i}, v{T+i}")
            for i in range(8): a(f"v_add_f32 v{T+i}, 1.0, v{T+i}")
            for i in range(8): a(f"v_rcp_f32 v{T+i}, v{T+i}")
            for i in range(8): a(f"v_mul_f32 v{x+i}, v{x+i}, v{T+i}")
            d=T+8+4*((2*j+p)%4)
            g.pack(d,x,x+4)
            a(f"ds_write_b128 v{3+j}, {vr(d,4)} offset:{2048*p}")
    g.baddr(HB)
    a("s_waitcnt lgkmcnt(0)\ns_barrier")
    g.stamp("C.gelu")
    tp=g.o.get("tailpf",1)
    def rf(q):
        if q+18<108: g.ld(q%18,("w",q+18))
        elif tp:
            if q+18==108: g.stream(sWA)
            g.ld(q%18,("w",q+18))
    g.gemm(3,4,True,54,rf,True)
    g.stamp("C.g2")
    a(f"""v_and_b32 v5, 31, v0
    v_lshlrev_b32 v5, 4, v5
    v_lshrrev_b32 v6, 5, v0
    s_mul_i32 s27, s{sW}, 6
    v_add_u32 v6, s27, v6
    s_mov_b32 s28, {8*9216}""")
    for j in range(3):
        a(f"""v_mul_u32_u24 v7, 57, v6
        v_lshrrev_b32 v7, 9, v7
        v_mad_u32_u24 v{2+j}, v7, s28, v5
        v_mul_u32_u24 v7, 9, v7
        v_sub_u32 v7, v6, v7
        v_lshl_add_u32 v{2+j}, v7, 10, v{2+j}
        v_add_u32 v6, 2, v6""")
    a(f"""s_mul_i32 s29, s{sTAU}, {64*9216}
    s_mul_i32 s27, s{sM}, 9216
    s_add_u32 s29, s29, s27
    s_mul_i32 s27, s{sL}, {PL}
    s_add_u32 s29, s29, s27
    s_add_u32 s29, s29, {PP}""")
    for j in range(3):
        for p in range(2):
            d=T+4*(2*j+p); x=ACC+16*j+8*p
            g.pack(d,x,x+4)
            a(f"buffer_store_dwordx4 {vr(d,4)}, v{2+j}, {WSR}, s29 offen offset:{512*p} sc1")
    a("s_setprio 0")
    g.flag(4)
    g.stamp("C.flag")
def phaseD(g):
    a=g.a
    if not g.o.get("tailpf",1): g.prefetch(sWA)
    a(f"""s_min_u32 s36, s{sW}, 8
    s_lshl_b32 s36, s36, 10
    s_add_u32 s27, s36, {RES}
    v_add_u32 v5, s27, v1
    ds_read_b128 v[88:91], v5
    s_mov_b32 s37, 0xffff0000
    s_waitcnt lgkmcnt(0)""")
    for k in range(4):
        a(f"""v_lshlrev_b32 v{80+2*k}, 16, v{88+k}
        v_and_b32 v{81+2*k}, s37, v{88+k}
        v_add_f32 v{80+2*k}, s{48+2*k}, v{80+2*k}
        v_add_f32 v{81+2*k}, s{49+2*k}, v{81+2*k}""")
    g.poll(4)
    g.stamp("D.polled")
    a(f"""s_cmp_ge_u32 s{sW}, 9
    s_cbranch_scc1 D_DONE
    s_lshl_b32 s27, s{sTAU}, 3
    s_add_u32 s27, s27, s{sM}
    s_mul_i32 s29, s27, {8*9216}
    s_mul_i32 s27, s{sL}, {PL}
    s_add_u32 s29, s29, s27
    s_add_u32 s29, s29, s36
    s_add_u32 s29, s29, {PP}""")
    g.q=[]
    for i in range(8):
        g.vm(f"buffer_load_dwordx4 {vr(BB+4*i,4)}, v1, {WSR}, s29 offen sc1",("p",i))
        if i<7: a("s_add_u32 s29, s29, 9216")
    g.xstore_addr(); g.xbase(29,X2,0)
    a(f"""s_lshl_b32 s36, s{sTAU}, 6
    v_add_u32 v3, s36, v0
    v_mul_u32_u24 v3, 1152, v3""")
    for i in range(8):
        g.vwait(("p",i))
        for k in range(4):
            a(f"""v_lshlrev_b32 v{92+2*k}, 16, v{BB+4*i+k}
            v_and_b32 v{93+2*k}, s37, v{BB+4*i+k}""")
        for k in range(8): a(f"v_add_f32 v{80+k}, v{80+k}, v{92+k}")
    for k in range(4): a(f"v_cvt_pk_bf16_f32 v{88+k}, v{80+2*k}, v{81+2*k}")
    a(f"""s_cmp_eq_u32 s{sL}, 0
    s_cbranch_scc1 D_MID
    buffer_store_dwordx4 v[88:91], v3, s[12:15], s43 offen
    s_branch D_DONE""")
    a.label("D_MID")
    a(f"buffer_store_dwordx4 v[88:91], v2, {WSR}, s29 offen sc1\nds_write_b128 v5, v[88:91]")
    a.label("D_DONE")
    g.stamp("D.sum")
    a(f"s_cmp_lg_u32 s{sL}, 0\ns_cbranch_scc1 M_FIN")
    g.flag(5)
    g.stamp("D.flag")
    a(f"s_mov_b32 s{sL}, 1\ns_mov_b32 s{sE}, 5\ns_branch A_TOP")
    a.label("M_FIN")
    if g.o.get("ts"):
        a(f"""s_mul_i32 s27, s2, 12
        s_add_u32 s27, s27, s{sW}
        s_lshl_b32 s27, s27, 8
        s_add_u32 s27, s27, {TSB}
        s_getreg_b32 s28, hwreg(HW_REG_XCC_ID)
        v_writelane_b32 v167, s28, 62
        s_getreg_b32 s28, hwreg(HW_REG_HW_ID)
        v_writelane_b32 v167, s28, 63
        v_lshlrev_b32 v2, 2, v0
        buffer_store_dword v167, v2, {WSR}, s27 offen""")
    a.label("M_END")
    a("s_endpgm")
```

```python
from asmlib import *
from layout import *
def gen_prep():
    a=Asm()
    RS=1168
    a.label("prep_kernel")
    a(f"""s_cmp_ge_u32 s2, 432
    s_cbranch_scc1 P_END
    s_load_dwordx4 s[24:27], s[0:1], 8
    s_load_dwordx2 s[28:29], s[0:1], 32
    s_load_dwordx2 s[30:31], s[0:1], 48
    s_load_dwordx2 s[32:33], s[0:1], 80
    v_lshrrev_b32 v2, 6, v0
    v_and_b32 v1, 63, v0
    v_readfirstlane_b32 s22, v2
    s_mul_hi_u32 s20, s2, {(2**32+143)//144}
    s_mul_i32 s3, s20, 144
    s_sub_u32 s3, s2, s3
    s_and_b32 s21, s3, 7
    s_lshr_b32 s23, s3, 3
    s_waitcnt lgkmcnt(0)
    s_mov_b32 s4, s32
    s_mov_b32 s5, s33
    s_mov_b32 s6, {WS_SIZE}
    s_mov_b32 s7, 0x20000
    s_cmp_lg_u32 s2, 431
    s_cbranch_scc1 P_NOZ
    v_mov_b32 v4, 0
    v_mov_b32 v5, 0
    v_mov_b32 v6, 0
    v_mov_b32 v7, 0
    v_lshlrev_b32 v3, 5, v0
    buffer_store_dwordx4 v[4:7], v3, s[4:7], 0 offen
    buffer_store_dwordx4 v[4:7], v3, s[4:7], 0 offen offset:16""")
    a.label("P_NOZ")
    a(f"""v_mov_b32 v4, 0
    v_mov_b32 v5, 0
    v_mov_b32 v6, 0
    v_mov_b32 v7, 0
    v_and_b32 v3, 31, v0
    v_mul_u32_u24 v3, {RS}, v3
    ds_write_b128 v3, v[4:7] offset:1152
    s_cmp_eq_u32 s20, 2
    s_cbranch_scc1 P_T2
    s_cmp_eq_u32 s20, 1
    s_cbranch_scc1 P_T1
    s_mov_b32 s8, s28
    s_mov_b32 s9, s29
    s_mov_b32 s10, {576*4608*2}
    s_mov_b32 s11, 0x20000
    s_mov_b32 s14, 9216
    s_mul_i32 s12, s23, {32*9216}
    s_mul_i32 s13, s21, 1152
    s_add_u32 s12, s12, s13
    s_mul_i32 s15, s23, 3072
    s_branch P_LD""")
    a.label("P_T1")
    a(f"""s_mov_b32 s8, s30
    s_mov_b32 s9, s31
    s_mov_b32 s10, {576*4608*2}
    s_mov_b32 s11, 0x20000
    s_mov_b32 s14, 1152
    s_mul_i32 s12, s21, {576*1152}
    s_mul_i32 s13, s23, {32*1152}
    s_add_u32 s12, s12, s13
    s_mul_i32 s15, s23, 3072
    s_add_u32 s15, s15, {18*3072}""")
    a.label("P_LD")
    for i in range(9):
        a(f"""v_add_u32 v2, {256*i}, v0
        v_mul_u32_u24 v3, 3641, v2
        v_lshrrev_b32 v3, 18, v3
        v_mul_u32_u24 v4, 72, v3
        v_sub_u32 v4, v2, v4
        v_lshlrev_b32 v4, 4, v4
        v_mad_u32_u24 v5, v3, s14, v4
        v_mul_u32_u24 v3, {RS}, v3
        v_add_u32 v{50+i}, v3, v4
        buffer_load_dwordx4 v[{8+4*i}:{11+4*i}], v5, s[8:11], s12 offen""")
    for i in range(9):
        a(f"""s_waitcnt vmcnt({8-i})
        ds_write_b128 v{50+i}, v[{8+4*i}:{11+4*i}]""")
    a(f"""s_mul_i32 s13, s21, {1296*1024}
    s_add_u32 s15, s15, s13
    s_add_u32 s15, s15, {W12}
    s_mul_i32 s13, s22, {3*108*1024}
    s_add_u32 s15, s15, s13
    v_and_b32 v2, 15, v1
    v_lshrrev_b32 v3, 4, v1
    v_mul_u32_u24 v3, {8*RS}, v3
    v_lshl_add_u32 v2, v2, 1, v3
    s_mul_i32 s13, s22, {9*32}
    v_add_u32 v2, s13, v2
    v_lshlrev_b32 v3, 4, v1
    s_waitcnt lgkmcnt(0)
    s_barrier""")
    for i in range(9):
        for j in range(8):
            a(f"ds_read_u16 v{64+8*i+j}, v2 offset:{j*RS+32*i}")
    for i in range(9):
        a(f"s_waitcnt lgkmcnt({min(15,8*(8-i))})")
        for j in range(4): a(f"v_lshl_or_b32 v{8+4*i+j}, v{65+8*i+2*j}, 16, v{64+8*i+2*j}")
        a(f"""
        buffer_store_dwordx4 v[{8+4*i}:{11+4*i}], v3, s[4:7], s15 offen offset:{(i%3)*1024}""")
        if i%3==2: a(f"s_add_u32 s15, s15, {108*1024}")
    a("s_branch P_END")
    a.label("P_T2")
    a(f"""s_mov_b32 s8, s24
    s_mov_b32 s9, s25
    s_mov_b32 s10, {576*1728*2}
    s_mov_b32 s11, 0x20000
    s_mov_b32 s12, s26
    s_mov_b32 s13, s27
    s_mov_b32 s14, {576*576*2}
    s_mov_b32 s15, 0x20000
    s_mul_i32 s16, s23, {32*3456}
    s_mul_i32 s17, s21, 144
    s_add_u32 s16, s16, s17
    s_mul_i32 s18, s23, {32*1152}
    s_add_u32 s18, s18, s17
    s_movk_i32 s19, 3456
    s_movk_i32 s34, 1152""")
    for i in range(4):
        a(f"""v_add_u32 v2, {256*i}, v0
        v_mul_u32_u24 v3, 2428, v2
        v_lshrrev_b32 v3, 16, v3
        v_mul_u32_u24 v4, 27, v3
        v_sub_u32 v4, v2, v4
        v_mul_u32_u24 v5, 57, v4
        v_lshrrev_b32 v5, 9, v5
        v_mul_u32_u24 v6, 9, v5
        v_sub_u32 v6, v4, v6
        v_lshlrev_b32 v6, 4, v6
        v_mad_u32_u24 v6, v5, s34, v6
        v_mad_u32_u24 v6, v3, s19, v6
        v_lshlrev_b32 v4, 4, v4
        v_mul_u32_u24 v3, {RS}, v3
        v_add_u32 v{50+i}, v3, v4""")
        if i==3:
            a(f"""v_cmp_gt_u32 vcc, 864, v2
            v_mov_b32 v7, {32*RS}
            v_cndmask_b32 v53, v7, v53, vcc
            v_mov_b32 v7, 0
            v_cndmask_b32 v6, v7, v6, vcc""")
        a(f"buffer_load_dwordx4 v[{8+4*i}:{11+4*i}], v6, s[8:11], s16 offen")
    for i in range(2):
        a(f"""v_add_u32 v2, {256*i}, v0
        v_mul_u32_u24 v3, 7282, v2
        v_lshrrev_b32 v3, 16, v3
        v_mul_u32_u24 v4, 9, v3
        v_sub_u32 v4, v2, v4
        v_lshlrev_b32 v4, 4, v4
        v_mad_u32_u24 v6, v3, s34, v4
        v_mul_u32_u24 v3, {RS}, v3
        v_add_u32 v{54+i}, v3, v4
        v_add_u32 v{54+i}, 432, v{54+i}""")
        if i==1:
            a(f"""v_cmp_gt_u32 vcc, 288, v2
            v_mov_b32 v7, {32*RS}
            v_cndmask_b32 v55, v7, v55, vcc
            v_mov_b32 v7, 0
            v_cndmask_b32 v6, v7, v6, vcc""")
        a(f"buffer_load_dwordx4 v[{24+4*i}:{27+4*i}], v6, s[12:15], s18 offen")
    for i in range(6):
        a(f"""s_waitcnt vmcnt({5-i})
        ds_write_b128 v{50+i}, v[{8+4*i}:{11+4*i}]""")
    a(f"""v_and_b32 v2, 15, v1
    v_lshrrev_b32 v3, 4, v1
    v_mul_u32_u24 v3, {8*RS}, v3
    s_mul_i32 s35, s22, 36
    v_lshl_add_u32 v4, v2, 1, v3
    v_add_u32 v51, s35, v4
    v_add_u32 v50, 144, v51
    s_lshl_b32 s35, s22, 5
    v_add_u32 v52, s35, v4
    v_add_u32 v53, 432, v52
    v_add_u32 v52, 288, v52
    s_cmp_eq_u32 s22, 2
    s_cselect_b32 s35, 144, 0
    s_add_u32 s35, s35, {288+128}
    v_add_u32 v54, s35, v4
    v_add_u32 v5, 1152, v3
    v_cmp_gt_u32 vcc, 8, v2
    v_cndmask_b32 v54, v5, v54, vcc
    v_lshrrev_b32 v5, 2, v2
    v_mul_u32_u24 v5, 36, v5
    v_and_b32 v6, 1, v2
    v_lshl_add_u32 v5, v6, 1, v5
    v_add_u32 v5, v3, v5
    v_and_b32 v6, 2, v2
    v_cmp_eq_u32 vcc, 0, v6
    v_add_u32 v6, 32, v5
    v_add_u32 v5, {144+32}, v5
    v_cndmask_b32 v5, v6, v5, vcc
    s_cmp_eq_u32 s22, 1
    s_cselect_b64 vcc, -1, 0
    s_nop 1
    v_cndmask_b32 v54, v54, v5, vcc
    v_lshlrev_b32 v3, 4, v1
    s_mul_i32 s36, s21, {252*1024}
    s_add_u32 s36, s36, {WA}
    s_mul_i32 s37, s21, {90*1024}
    s_add_u32 s37, s37, {WO}
    s_lshl_b32 s38, s23, 10
    s_mul_i32 s39, s22, {36*1024}
    s_add_u32 s40, s36, s39
    s_add_u32 s40, s40, s38
    s_add_u32 s40, s40, s38
    s_mul_i32 s39, s22, {18*1024}
    s_add_u32 s41, s36, s39
    s_add_u32 s41, s41, s38
    s_add_u32 s41, s41, {144*1024}
    s_add_u32 s42, s37, s39
    s_add_u32 s42, s42, s38
    s_add_u32 s43, s36, s38
    s_add_u32 s43, s43, {(144+72)*1024}
    s_cmp_eq_u32 s22, 1
    s_cselect_b32 s39, {18*1024}, 0
    s_add_u32 s43, s43, s39
    s_add_u32 s44, s37, s38
    s_add_u32 s44, s44, {72*1024}
    s_cmp_eq_u32 s22, 2
    s_cselect_b32 s43, s44, s43
    s_waitcnt lgkmcnt(0)
    s_barrier""")
    for i in range(5):
        for j in range(8):
            a(f"ds_read_u16 v{64+8*i+j}, v{50+i} offset:{j*RS}")
    a("s_waitcnt lgkmcnt(0)")
    for i in range(5):
        for j in range(4): a(f"v_lshl_or_b32 v{8+4*i+j}, v{65+8*i+2*j}, 16, v{64+8*i+2*j}")
    a(f"""
    buffer_store_dwordx4 v[8:11], v3, s[4:7], s40 offen
    buffer_store_dwordx4 v[12:15], v3, s[4:7], s40 offen offset:1024
    buffer_store_dwordx4 v[16:19], v3, s[4:7], s41 offen
    buffer_store_dwordx4 v[20:23], v3, s[4:7], s42 offen
    s_cmp_eq_u32 s22, 3
    s_cbranch_scc1 P_END
    buffer_store_dwordx4 v[24:27], v3, s[4:7], s43 offen""")
    a.label("P_END")
    a("s_endpgm")
    return a.l, 32*RS+16
```

```python
import sys, json
from asmlib import *
from layout import *
from prep import gen_prep
from mainK import G
import phases, phases2
def kd(name,vg,sg):
    return f""".amdhsa_kernel {name}
  .amdhsa_next_free_vgpr {vg}
  .amdhsa_next_free_sgpr {sg}
  .amdhsa_accum_offset {vg}
  .amdhsa_group_segment_fixed_size 0
  .amdhsa_kernarg_size 88
  .amdhsa_user_sgpr_count 2
  .amdhsa_user_sgpr_kernarg_segment_ptr 1
  .amdhsa_system_sgpr_workgroup_id_x 1
.end_amdhsa_kernel
"""
def build(opt):
    pl,plds=gen_prep()
    g=G(opt)
    phases.entry(g); phases.phaseA(g); tail=phases.phaseB(g); phases2.phaseB2(g); phases2.phaseC(g); phases2.phaseD(g)
    ml=g.a.l+tail.l
    hdr=open("interleave_layers__sliding_block__mixer_channel_mlp__prompt.s.ref").read().split("; Override")[0]
    s=hdr+f"; @launch kernel=prep_kernel grid=(432,1,1) block=(256,1,1) lds={plds}\n"
    for i in range(opt.get("extra",0)): s+=f"; @launch kernel=prep_kernel grid=(432,1,1) block=(256,1,1) lds={plds}\n"
    s+=f"; @launch kernel=main_kernel grid=(256,1,1) block=(768,1,1) lds={LDS_SIZE}\n"
    s+='.amdgcn_target "amdgcn-amd-amdhsa--gfx950"\n.text\n'
    for n,l in (("prep_kernel",pl),("main_kernel",ml)):
        s+=f".globl {n}\n.p2align 8\n.type {n},@function\n"+"\n".join((x if x.endswith(":") else "    "+x) for x in fix_hazards(l))+"\n"
    s+='.section .rodata,"a"\n.p2align 6\n'+kd("prep_kernel",136,48)+".p2align 6\n"+kd("main_kernel",168,102)
    return s,g.names
if __name__=="__main__":
    opt=json.loads(sys.argv[2]) if len(sys.argv)>2 else {}
    s,names=build(opt)
    open(sys.argv[1],"w").write(s)
    if opt.get("ts"): open(sys.argv[1]+".names","w").write(json.dumps(names))
```
